```python
import torch

def _softmax(x, axis=-1):
    return torch.softmax(x, dim=axis)
def _gelu(x):
    return torch.nn.functional.gelu(x, approximate="tanh")
def _silu(x):
    return torch.nn.functional.silu(x)
def _sigmoid(x):
    return torch.sigmoid(x)
def _layernorm(x, axis=-1, eps=1e-5):
    m = x.mean(dim=axis, keepdim=True)
    v = x.var(dim=axis, keepdim=True, unbiased=False)
    return (x - m) / torch.sqrt(v + eps)
def _scatter_add(tgt, idx, src, axis=0):
    return tgt.clone().index_add_(axis, idx, src)
def _segment_sum(src, seg, n):
    out = torch.zeros((n,) + src.shape[1:], dtype=src.dtype)
    return out.index_add_(0, seg, src)
def _pad(x, pw):
    flat = tuple(v for pair in reversed(pw) for v in pair)
    return torch.nn.functional.pad(x, flat)

kernel_name = 'parallel_sum__mha_block_cached__swiglu_ffn__decode'

def setup_inputs():

    _w = (lambda a: (lambda t: t.to(torch.bfloat16) if t.is_floating_point() else t)(torch.as_tensor(a)))
    def _A_setup():
        B, Sq, D = 2, 1, 448
        H, Sk, Dh = 16, 8192, 256
        return {
            "x": _w((lambda *s: torch.randn(*s, dtype=torch.bfloat16) * 0.05)(B, Sq, D)),
            "k_cache": _w((lambda *s: torch.randn(*s, dtype=torch.bfloat16) * 3.2)(B, H, Sk, Dh)),
            "v_cache": _w((lambda *s: torch.randn(*s, dtype=torch.bfloat16) * 1.6)(B, H, Sk, Dh)),
            "wq": _w((lambda *s: torch.randn(*s, dtype=torch.bfloat16) * 3.2)(D, H * Dh) * (D ** -0.5)),
            "wo": _w((lambda *s: torch.randn(*s, dtype=torch.bfloat16) * 1.6)(H * Dh, D) * ((H * Dh) ** -0.5)),
        }
    _A_in = _A_setup()

    def _B_setup():
        B, S, D, F = 2, 1, 448, 1792
        return {
            "x": _w((lambda *s: torch.randn(*s, dtype=torch.bfloat16) * 0.05)(B, S, D)),
            "w_gate": _w((lambda *s: torch.randn(*s, dtype=torch.bfloat16) * 0.05)(D, F)),
            "w_up": _w((lambda *s: torch.randn(*s, dtype=torch.bfloat16) * 0.05)(D, F)),
            "w_down": _w((lambda *s: torch.randn(*s, dtype=torch.bfloat16) * 0.05)(F, D)),
        }
    _B_in = _B_setup()

    return {
        "A_x": _A_in["x"],
        "A_k_cache": _A_in["k_cache"],
        "A_v_cache": _A_in["v_cache"],
        "A_wq": _A_in["wq"],
        "A_wo": _A_in["wo"],
        "B_x": _B_in["x"],
        "B_w_gate": _B_in["w_gate"],
        "B_w_up": _B_in["w_up"],
        "B_w_down": _B_in["w_down"],
    }

def reference(A_x, A_k_cache, A_v_cache, A_wq, A_wo, B_x, B_w_gate, B_w_up, B_w_down):
    def _A_ref(x, k_cache, v_cache, wq, wo):
        B, Sq, D = x.shape
        H, Dh = 16, 256
        q = (lambda x, *d: x.permute(*d))((x @ wq).reshape(B, Sq, H, Dh), 0, 2, 1, 3)
        scores = torch.einsum("bhqd,bhkd->bhqk", q, k_cache) * (Dh ** -0.5)
        p = _softmax(scores, axis=-1)
        o = torch.einsum("bhqk,bhkd->bhqd", p, v_cache)
        return (lambda x, *d: x.permute(*d))(o, 0, 2, 1, 3).reshape(B, Sq, H * Dh) @ wo

    def _B_ref(x, w_gate, w_up, w_down):
        g = _silu(x @ w_gate)
        u = x @ w_up
        return (g * u) @ w_down

    x = A_x
    xn = _layernorm(x, axis=-1)
    return x + _A_ref(xn, A_k_cache, A_v_cache, A_wq, A_wo) + _B_ref(xn, B_w_gate, B_w_up, B_w_down)
```

```python
import re

TRANS = {"v_exp_f32", "v_rcp_f32", "v_sqrt_f32", "v_rsq_f32", "v_log_f32"}
REG_RE = re.compile(r"^(-?)(abs\()?([vs])(\d+|\[(\d+):(\d+)\])\)?$")


def regs_of(tok):
    tok = tok.strip()
    m = REG_RE.match(tok)
    if not m:
        if tok in ("vcc", "vcc_lo", "vcc_hi"):
            return ("s", ["vcc"])
        return None
    kind = m.group(3)
    if m.group(5) is not None:
        return (kind, list(range(int(m.group(5)), int(m.group(6)) + 1)))
    return (kind, [int(m.group(4))])


def v(i, n=1):
    return f"v{i}" if n == 1 else f"v[{i}:{i+n-1}]"


def s(i, n=1):
    return f"s{i}" if n == 1 else f"s[{i}:{i+n-1}]"


class Asm:
    def __init__(self):
        self.lines = []
        self.slot = 0
        self.vw = {}
        self.sw = {}
        self.store_data = {}
        self.vm_issued = 0

    def raw(self, text):
        self.lines.append(text)

    def comment(self, text):
        self.lines.append("    ; " + text)

    def label(self, name):
        self.lines.append(name + ":")
        self.nop(4)

    def nop(self, n):
        while n > 0:
            k = min(n, 16)
            self.lines.append(f"    s_nop {k-1}")
            self.slot += k
            n -= k

    def _need(self, wslot, dist):
        have = self.slot - wslot - 1
        return max(0, dist - have)

    def I(self, op, *ops, mods=""):
        ops = [str(o) for o in ops]
        is_valu = op.startswith("v_")
        is_dpp = ("quad_perm" in mods) or ("row_" in mods and "row_mask" in mods)
        is_perm = op.startswith("v_permlane")
        is_dot = op.startswith("v_dot")
        is_trans = op in TRANS
        is_vmem = op.startswith("buffer_") or op.startswith("global_")
        is_ds = op.startswith("ds_")
        reads, writes = [], []
        if is_valu:
            if op.startswith("v_cmp"):
                writes.append(ops[0]); reads += ops[1:]
            elif is_perm:
                writes += ops[:2]; reads += ops[:2]
            elif op in ("v_fmac_f32", "v_dot2c_f32_bf16"):
                writes.append(ops[0]); reads += ops
            else:
                writes.append(ops[0]); reads += ops[1:]
            if op == "v_cndmask_b32" and len(ops) == 3:
                reads.append("vcc")
        elif is_vmem:
            if "load" in op:
                writes.append(ops[0]); reads += ops[1:]
            else:
                reads += ops
        elif is_ds:
            if "read" in op:
                writes.append(ops[0]); reads += ops[1:]
            else:
                reads += ops
        else:
            reads += ops[1:]
        need = 0
        rv, rs, wv, ws = [], [], [], []
        for t in reads:
            r = regs_of(t)
            if r:
                (rv if r[0] == "v" else rs).extend(r[1])
        for t in writes:
            r = regs_of(t)
            if r:
                (wv if r[0] == "v" else ws).extend(r[1])
        for r in rv:
            if r in self.vw:
                wslot, kind, wop = self.vw[r]
                if kind == "mem":
                    continue
                if is_dpp or is_perm:
                    need = max(need, self._need(wslot, 2))
                if kind == "trans" and is_valu and not is_trans:
                    need = max(need, self._need(wslot, 1))
                if kind == "trans" and not is_valu:
                    need = max(need, self._need(wslot, 1))
                if kind == "dot":
                    is_srcc = is_dot and wop == op and (
                        (op == "v_dot2c_f32_bf16" and regs_of(ops[0])[1] == [r] and
                         not any(regs_of(t) and regs_of(t)[0] == "v" and r in regs_of(t)[1] for t in ops[1:]))
                        or (op == "v_dot2_f32_bf16" and regs_of(ops[3]) and regs_of(ops[3])[1] == [r] and
                            not any(regs_of(t) and regs_of(t)[0] == "v" and r in regs_of(t)[1] for t in ops[1:3])))
                    if not is_srcc:
                        need = max(need, self._need(wslot, 3))
                if op in ("v_readlane_b32", "v_readfirstlane_b32"):
                    need = max(need, self._need(wslot, 1))
        for r in wv:
            if r in self.vw:
                wslot, kind, wop = self.vw[r]
                if kind == "dot" and not (is_dot and wop == op):
                    need = max(need, self._need(wslot, 3))
            if r in self.store_data:
                need = max(need, self._need(self.store_data[r], 2))
        for r in rs:
            if r in self.sw:
                if is_valu:
                    d = 4 if op in ("v_readlane_b32", "v_writelane_b32") else 2
                    need = max(need, self._need(self.sw[r], d))
                elif is_vmem:
                    need = max(need, self._need(self.sw[r], 5))
                else:
                    need = max(need, self._need(self.sw[r], 2))
        if need:
            self.nop(need)
        text = "    " + op + " " + ", ".join(ops)
        if mods:
            text += " " + mods
        self.lines.append(text)
        kind = "dot" if is_dot else "trans" if is_trans else "valu" if is_valu else "mem"
        for r in wv:
            self.vw[r] = (self.slot, kind, op)
        if is_valu:
            for r in ws:
                self.sw[r] = self.slot
        else:
            for r in ws:
                self.sw.pop(r, None)
        if is_vmem and "store" in op and ("x4" in op or "x3" in op):
            for r in regs_of(ops[0])[1]:
                self.store_data[r] = self.slot
        self.slot += 1
        if is_vmem:
            self.vm_issued += 1
            return self.vm_issued - 1
        return None

    def S(self, op, *ops):
        ops = [str(o) for o in ops]
        need = 0
        for t in ops[1:]:
            r = regs_of(t)
            if r and r[0] == "s":
                for x in r[1]:
                    if x in self.sw:
                        need = max(need, self._need(self.sw[x], 2))
        if need:
            self.nop(need)
        self.lines.append("    " + op + (" " + ", ".join(ops) if ops else ""))
        if ops:
            r = regs_of(ops[0])
            if r and r[0] == "s":
                for x in r[1]:
                    self.sw.pop(x, None)
        self.slot += 1

    def wait_vm(self, op_id):
        if op_id <= getattr(self, "vm_waited", -1):
            return
        self.vm_waited = op_id
        n = self.vm_issued - 1 - op_id
        assert 0 <= n <= 63, n
        self.lines.append(f"    s_waitcnt vmcnt({n})")
        self.slot += 1

    def wait_lgkm(self, n=0):
        self.lines.append(f"    s_waitcnt lgkmcnt({n})")
        self.slot += 1

    def barrier(self):
        self.lines.append("    s_barrier")
        self.slot += 1

    def text(self):
        return "\n".join(self.lines) + "\n"
```

```python
import struct, sys
from asmlib import Asm, v, s

NAME = "parallel_sum__mha_block_cached__swiglu_ffn__decode"
R = 40
NT = " nt"
for a_ in sys.argv[1:]:
    if a_.startswith("R="):
        R = int(a_[2:])
    if a_ == "nont":
        NT = ""


def f32(x):
    return "0x%08x" % struct.unpack("<I", struct.pack("<f", x))[0]


C_EXP = 1.4426950408889634 / 16.0
YOFF, MLOFF, YFOFF = 0, 0x80000, 0x100000
XN, QP, FP, YFP, OP, OML, YP = 0, 28672, 36864, 37888, 66560, 74752, 75008
LDS1 = 89344

vTID, vKV, vWQ, vWO = 0, 1, 2, 3
T = list(range(4, 12))
Q = list(range(12, 20))
O = list(range(20, 36))
SC = list(range(36, 52))
P = list(range(52, 84))
vM, vL = 84, 85
vLANE, vROW, vC16, vA0, vXF0, vXF1, vA1, vA2, vA3, vA4 = range(86, 96)
RING0 = 96
assert RING0 + 4 * R <= 256
sOFF, sW, sHEAD, sB, sSPLIT, sG, sIDX, sXCD, sYROW, sC, sTMP = 3, 4, 5, 8, 9, 10, 11, 12, 13, 14, 15
sM56 = 6
SX, SK, SV, SWQ, SWO, SGA, SUP, SDN, SWS = 40, 44, 48, 52, 56, 60, 64, 68, 72
SRL = 76

DPPM = " row_mask:0xf bank_mask:0xf"
ROWSTEPS = ["quad_perm:[1,0,3,2]", "quad_perm:[2,3,0,1]", "row_half_mirror", "row_mirror"]


def srd(a, dst, ptr, nbytes):
    a.S("s_mov_b32", s(dst), s(ptr))
    a.S("s_and_b32", s(dst + 1), s(ptr + 1), "0xffff")
    a.S("s_mov_b32", s(dst + 2), hex(nbytes))
    a.S("s_mov_b32", s(dst + 3), "0x00020000")


def row_allreduce(a, regs, op="v_add_f32"):
    for st in ROWSTEPS:
        for r in regs:
            a.I(op + "_dpp", v(r), v(r), v(r), mods=st + DPPM)


def cross_rows_allreduce(a, r, t, op="v_add_f32"):
    a.I("v_mov_b32", v(t), v(r))
    a.I("v_permlane16_swap_b32", v(r), v(t))
    a.I(op, v(r), v(r), v(t))
    a.I("v_mov_b32", v(t), v(r))
    a.I("v_permlane32_swap_b32", v(r), v(t))
    a.I(op, v(r), v(r), v(t))


def reduce_scatter16(a, regs):
    for e in range(8):
        a.I("v_permlane32_swap_b32", v(regs[e]), v(regs[e + 8]))
    for e in range(8):
        a.I("v_add_f32", v(regs[e]), v(regs[e]), v(regs[e + 8]))
    for e in range(4):
        a.I("v_permlane16_swap_b32", v(regs[e]), v(regs[e + 4]))
    for e in range(4):
        a.I("v_add_f32", v(regs[e]), v(regs[e]), v(regs[e + 4]))


def bf16r(a, dst, src):
    a.I("v_cvt_pk_bf16_f32", v(dst), "0", v(src))


def gen_k1():
    a = Asm()
    a.raw(".p2align 8")
    a.raw(f".globl k1_kernel")
    a.raw(f".type k1_kernel,@function")
    a.raw("k1_kernel:")
    a.S("s_cmp_ge_u32", "s2", "256")
    a.S("s_cbranch_scc1", "K1_END")
    a.S("s_load_dwordx16", s(16, 16), s(0, 2), "0")
    a.S("s_load_dwordx8", s(32, 8), s(0, 2), "64")
    a.S("s_and_b32", s(sXCD), "s2", "7")
    a.S("s_lshr_b32", s(sIDX), "s2", "3")
    a.S("s_lshr_b32", s(sTMP), s(sIDX), "4")
    a.S("s_lshl_b32", s(sHEAD), s(sXCD), "1")
    a.S("s_add_u32", s(sHEAD), s(sHEAD), s(sTMP))
    a.S("s_lshr_b32", s(sB), s(sIDX), "3")
    a.S("s_and_b32", s(sB), s(sB), "1")
    a.S("s_and_b32", s(sSPLIT), s(sIDX), "7")
    a.S("s_min_u32", s(sTMP), s(sIDX), "27")
    a.S("s_mul_i32", s(sG), s(sXCD), "28")
    a.S("s_add_u32", s(sG), s(sG), s(sTMP))
    a.S("s_lshl_b32", s(sYROW), s(sB), "4")
    a.S("s_add_u32", s(sYROW), s(sYROW), s(sHEAD))
    a.S("s_lshl_b32", s(sYROW), s(sYROW), "3")
    a.S("s_add_u32", s(sYROW), s(sYROW), s(sSPLIT))
    a.S("s_mov_b32", s(sC), f32(C_EXP))
    a.S("s_mov_b32", s(sM56), "-1")
    a.S("s_mov_b32", s(sM56 + 1), "0x00ffffff")
    a.I("v_and_b32", v(vLANE), "63", v(vTID))
    a.I("v_lshrrev_b32", v(T[0]), "6", v(vTID))
    a.I("v_readfirstlane_b32", s(sW), v(T[0]))
    a.I("v_lshrrev_b32", v(vROW), "4", v(vLANE))
    a.I("v_and_b32", v(vC16), "15", v(vLANE))
    a.S("s_lshl_b32", s(sTMP), s(sYROW), "10")
    a.S("s_lshl_b32", s(sOFF), s(sW), "7")
    a.S("s_add_u32", s(sTMP), s(sTMP), s(sOFF))
    a.I("v_add_u32", v(T[0]), s(sTMP), v(vROW))
    a.I("v_lshlrev_b32", v(T[0]), "9", v(T[0]))
    a.I("v_lshl_add_u32", v(vKV), v(vC16), "4", v(T[0]))
    a.S("s_mul_i32", s(sTMP), s(sW), "56")
    a.I("v_add_u32", v(T[0]), s(sTMP), v(vROW))
    a.I("v_lshlrev_b32", v(T[0]), "13", v(T[0]))
    a.S("s_lshl_b32", s(sTMP), s(sHEAD), "9")
    a.I("v_add_u32", v(T[0]), s(sTMP), v(T[0]))
    a.I("v_lshl_add_u32", v(vWQ), v(vC16), "4", v(T[0]))
    a.S("s_lshl_b32", s(sTMP), s(sHEAD), "8")
    a.S("s_lshl_b32", s(sOFF), s(sW), "5")
    a.S("s_add_u32", s(sTMP), s(sTMP), s(sOFF))
    a.S("s_mul_i32", s(sTMP), s(sTMP), "896")
    a.I("v_lshlrev_b32", v(vA0), "4", v(vLANE))
    a.I("v_add_u32", v(vWO), s(sTMP), v(vA0))
    a.S("s_mov_b32", s(sTMP), "3584")
    a.I("v_mul_lo_u32", v(T[1]), s(sTMP), v(vTID))
    a.S("s_lshl_b32", s(sTMP), s(sG), "4")
    a.I("v_add_u32", v(T[1]), s(sTMP), v(T[1]))
    a.S("s_lshl_b32", s(sTMP), s(sG), "3")
    a.S("s_add_u32", s(sTMP), s(sTMP), s(sW))
    a.S("s_mul_i32", s(sTMP), s(sTMP), "896")
    a.I("v_add_u32", v(T[2]), s(sTMP), v(vA0))
    X0, X1, GA, UP, DN = P[0:4], P[4:8], P[8:12], P[12:16], P[16:20]
    for r in X0 + X1:
        a.I("v_mov_b32", v(r), "0")
    a.wait_lgkm(0)
    srd(a, SX, 16, 1792)
    srd(a, SK, 18, 134217728)
    srd(a, SV, 20, 134217728)
    srd(a, SWQ, 22, 448 * 4096 * 2)
    srd(a, SWO, 24, 4096 * 448 * 2)
    srd(a, SGA, 28, 448 * 1792 * 2)
    srd(a, SUP, 30, 448 * 1792 * 2)
    srd(a, SDN, 32, 1792 * 448 * 2)
    srd(a, SWS, 38, 0x200000)
    a.S("s_mov_b64", "exec", s(sM56, 2))
    idx0 = a.I("buffer_load_dwordx4", v(X0[0], 4), v(vA0), s(SX, 4), "0", mods="offen")
    idx1 = a.I("buffer_load_dwordx4", v(X1[0], 4), v(vA0), s(SX, 4), "0", mods="offen offset:896")
    a.S("s_mov_b64", "exec", "-1")
    idga = a.I("buffer_load_dwordx4", v(GA[0], 4), v(T[1]), s(SGA, 4), "0", mods="offen")
    idup = a.I("buffer_load_dwordx4", v(UP[0], 4), v(T[1]), s(SUP, 4), "0", mods="offen")
    iddn = a.I("buffer_load_dwordx4", v(DN[0], 4), v(T[2]), s(SDN, 4), "0", mods="offen")

    items = []
    for i in range(14):
        for c in range(2):
            items.append((SWQ, vWQ, i * 32768, c * 256, ""))
    KB = [28, 92]
    VB = [60, 124]
    for t in range(2):
        for srdr in (SK, SV):
            for j in range(16):
                for c in range(2):
                    items.append((srdr, vKV, (t * 8 + j // 2) * 4096, (j % 2) * 2048 + c * 256, NT))
    WOB = 156
    for i in range(32):
        items.append((SWO, vWO, (i // 4) * 3584, (i % 4) * 896, ""))
    assert len(items) == 188
    ids = {}
    state = {"soff": None}

    def slot(i):
        return RING0 + 4 * (i % R)

    def issue(i):
        if i >= len(items):
            return
        sr, vo, so, imm, nt = items[i]
        if so == 0:
            sarg = "0"
        else:
            if state["soff"] != so:
                a.S("s_mov_b32", s(sOFF), str(so))
                state["soff"] = so
            sarg = s(sOFF)
        mods = "offen" + (f" offset:{imm}" if imm else "") + nt
        ids[i] = a.I("buffer_load_dwordx4", v(slot(i), 4), v(vo), s(sr, 4), sarg, mods=mods)

    for i in range(R):
        issue(i)

    a.wait_vm(idx1)
    a.S("s_mul_i32", s(sTMP), s(sW), "3584")
    a.I("v_lshlrev_b32", v(vA1), "5", v(vLANE))
    a.I("v_add_u32", v(vA1), s(sTMP), v(vA1))
    for b, X in ((0, X0), (1, X1)):
        F = SC[8 * b: 8 * b + 8]
        for i in range(4):
            a.I("v_lshlrev_b32", v(F[2 * i]), "16", v(X[i]))
            a.I("v_and_b32", v(F[2 * i + 1]), "0xffff0000", v(X[i]))
        t0, t1, t2, t3, t4, t5 = T[0], T[3], T[4], T[5], T[6], T[7]
        a.I("v_add_f32", v(t0), v(F[0]), v(F[1]))
        a.I("v_add_f32", v(t1), v(F[2]), v(F[3]))
        a.I("v_add_f32", v(t2), v(F[4]), v(F[5]))
        a.I("v_add_f32", v(t3), v(F[6]), v(F[7]))
        a.I("v_add_f32", v(t0), v(t0), v(t1))
        a.I("v_add_f32", v(t2), v(t2), v(t3))
        a.I("v_add_f32", v(t0), v(t0), v(t2))
        row_allreduce(a, [t0])
        cross_rows_allreduce(a, t0, t1)
        a.I("v_mul_f32", v(t0), f32(1.0 / 448.0), v(t0))
        a.I("v_mov_b32", v(t2), "0")
        for i in range(8):
            a.I("v_sub_f32", v(t1), v(F[i]), v(t0))
            a.I("v_fmac_f32", v(t2), v(t1), v(t1))
        a.I("v_cndmask_b32", v(t2), "0", v(t2), s(sM56, 2))
        row_allreduce(a, [t2])
        cross_rows_allreduce(a, t2, t1)
        a.I("v_mul_f32", v(t2), f32(1.0 / 448.0), v(t2))
        bf16r(a, t0, t0)
        bf16r(a, t2, t2)
        a.I("v_add_f32", v(t2), f32(1e-5), v(t2))
        bf16r(a, t2, t2)
        a.I("v_sqrt_f32", v(t2), v(t2))
        bf16r(a, t2, t2)
        a.I("v_rcp_f32", v(t3), v(t2))
        for i in range(8):
            a.I("v_sub_f32", v(t1), v(F[i]), v(t0))
            bf16r(a, t1, t1)
            a.I("v_mul_f32", v(t4), v(t1), v(t3))
            a.I("v_fma_f32", v(t5), "-" + v(t4), v(t2), v(t1))
            a.I("v_fma_f32", v(t4), v(t5), v(t3), v(t4))
            bf16r(a, F[i], t4)
        a.S("s_mov_b64", "exec", s(sM56, 2))
        a.I("ds_write_b128", v(vA1), v(F[0], 4), mods=f"offset:{XN + b*1792}")
        a.I("ds_write_b128", v(vA1), v(F[4], 4), mods=f"offset:{XN + b*1792 + 16}")
        a.S("s_mov_b64", "exec", "-1")
    a.S("s_mul_i32", s(sTMP), s(sW), str(3584 + 56 * 4))
    a.S("s_mul_i32", s(sOFF), s(sB), "1792")
    state["soff"] = None
    a.S("s_add_u32", s(sTMP), s(sTMP), s(sOFF))
    a.I("v_lshlrev_b32", v(vA2), "2", v(vROW))
    a.I("v_add_u32", v(vA2), s(sTMP), v(vA2))
    a.S("s_mul_i32", s(sTMP), s(sW), "3584")
    a.I("v_lshlrev_b32", v(vA3), "2", v(vTID))
    a.I("v_add_u32", v(vA3), s(sTMP), v(vA3))
    for i in range(14):
        a.I("ds_read_b32", v(SC[i]), v(vA2), mods=f"offset:{XN + 16*i}")
    a.I("ds_read_b32", v(vXF0), v(vA3), mods=f"offset:{XN}")
    a.I("ds_read_b32", v(vXF1), v(vA3), mods=f"offset:{XN + 1792}")
    for r in O:
        a.I("v_mov_b32", v(r), "0")
    a.wait_lgkm(0)
    a.I("v_cmp_gt_u32", "vcc", "0x1c0", v(vTID))
    a.I("v_cndmask_b32", v(vXF0), "0", v(vXF0), "vcc")
    a.I("v_cndmask_b32", v(vXF1), "0", v(vXF1), "vcc")

    for i in range(14):
        a.wait_vm(ids[2 * i + 1])
        A_, B_ = slot(2 * i), slot(2 * i + 1)
        lo = T[i % 2]
        a.I("v_lshrrev_b32", v(lo), "16", v(SC[i]))
        for k in range(4):
            a.I("v_dot2c_f32_bf16", v(O[2 * k]), v(A_ + k), v(lo))
            a.I("v_dot2c_f32_bf16", v(O[2 * k + 1]), v(A_ + k), v(SC[i]))
            a.I("v_dot2c_f32_bf16", v(O[8 + 2 * k]), v(B_ + k), v(lo))
            a.I("v_dot2c_f32_bf16", v(O[8 + 2 * k + 1]), v(B_ + k), v(SC[i]))
        issue(2 * i + R)
        issue(2 * i + 1 + R)
    reduce_scatter16(a, O)
    a.I("v_lshrrev_b32", v(T[0]), "1", v(vROW))
    a.I("v_lshlrev_b32", v(T[0]), "9", v(T[0]))
    a.I("v_lshl_add_u32", v(T[0]), v(vC16), "5", v(T[0]))
    a.I("v_and_b32", v(T[1]), "1", v(vROW))
    a.I("v_lshl_add_u32", v(T[0]), v(T[1]), "4", v(T[0]))
    a.S("s_lshl_b32", s(sTMP), s(sW), "10")
    a.I("v_add_u32", v(vA4), s(sTMP), v(T[0]))
    a.I("ds_write_b128", v(vA4), v(O[0], 4), mods=f"offset:{QP}")

    a.wait_vm(idup)
    a.S("s_lshl_b32", s(sTMP), s(sW), "7")
    a.I("v_lshlrev_b32", v(T[2]), "4", v(vROW))
    a.I("v_add_u32", v(T[2]), s(sTMP), v(T[2]))
    G = SC
    for mat, W in ((0, GA), (1, UP)):
        for i in range(4):
            a.I("v_lshlrev_b32", v(T[0]), "16", v(W[i]))
            a.I("v_and_b32", v(T[1]), "0xffff0000", v(W[i]))
            a.I("v_mul_f32", v(G[2 * i]), v(T[0]), v(vXF0))
            a.I("v_mul_f32", v(G[2 * i + 1]), v(T[1]), v(vXF0))
            a.I("v_mul_f32", v(G[8 + 2 * i]), v(T[0]), v(vXF1))
            a.I("v_mul_f32", v(G[8 + 2 * i + 1]), v(T[1]), v(vXF1))
        reduce_scatter16(a, G)
        row_allreduce(a, G[0:4])
        a.I("ds_write_b128", v(T[2]), v(G[0], 4), mods=f"offset:{FP + mat*64}")
    a.wait_lgkm(0)
    a.barrier()

    a.I("v_lshlrev_b32", v(T[0]), "5", v(vC16))
    QF = SC
    BUF = P[20:32]
    first = True
    for w in range(8):
        for part, off in ((0, 0), (1, 16), (2, 512), (3, 528)):
            dst = QF[4 * part] if first else BUF[4 * (part % 3)]
            a.I("ds_read_b128", v(dst, 4), v(T[0]), mods=f"offset:{QP + w*1024 + off}")
            if not first:
                if part % 3 == 2 or part == 3:
                    a.wait_lgkm(0)
                    ps = [0, 1, 2] if part == 2 else [3]
                    for pp in ps:
                        for k in range(4):
                            a.I("v_add_f32", v(QF[4 * pp + k]), v(QF[4 * pp + k]), v(BUF[4 * (pp % 3) + k]))
        if first:
            a.wait_lgkm(0)
        first = False
    for k in range(8):
        a.I("v_cvt_pk_bf16_f32", v(Q[k]), v(QF[2 * k]), v(QF[2 * k + 1]))

    a.S("s_lshl_b32", s(sTMP), s(sW), "2")
    a.I("v_mov_b32", v(T[0]), s(sTMP))
    HS = SC[0:4]
    HB = SC[4:8]
    for w in range(7):
        for q_, off in enumerate((0, 32, 64, 96)):
            dst = HS[q_] if w == 0 else HB[q_]
            a.I("ds_read_b32", v(dst), v(T[0]), mods=f"offset:{FP + w*128 + off}")
        a.wait_lgkm(0)
        if w > 0:
            for q_ in range(4):
                a.I("v_add_f32", v(HS[q_]), v(HS[q_]), v(HB[q_]))
    for b in range(2):
        g_, u_ = HS[b], HS[2 + b]
        bf16r(a, g_, g_)
        bf16r(a, u_, u_)
        a.I("v_mul_f32", v(T[1]), f32(-1.4426950408889634), v(g_))
        a.I("v_exp_f32", v(T[1]), v(T[1]))
        a.I("v_add_f32", v(T[1]), "1.0", v(T[1]))
        a.I("v_rcp_f32", v(T[2]), v(T[1]))
        a.I("v_mul_f32", v(T[3]), v(g_), v(T[2]))
        a.I("v_fma_f32", v(T[4]), "-" + v(T[3]), v(T[1]), v(g_))
        a.I("v_fma_f32", v(T[3]), v(T[4]), v(T[2]), v(T[3]))
        bf16r(a, T[3], T[3])
        a.I("v_mul_f32", v(T[3]), v(T[3]), v(u_))
        bf16r(a, HS[b], T[3])
    a.wait_vm(iddn)
    YV = SC[8:16] + P[20:28]
    for i in range(4):
        a.I("v_lshlrev_b32", v(T[0]), "16", v(DN[i]))
        a.I("v_and_b32", v(T[1]), "0xffff0000", v(DN[i]))
        a.I("v_mul_f32", v(YV[2 * i]), v(T[0]), v(HS[0]))
        a.I("v_mul_f32", v(YV[2 * i + 1]), v(T[1]), v(HS[0]))
        a.I("v_mul_f32", v(YV[8 + 2 * i]), v(T[0]), v(HS[1]))
        a.I("v_mul_f32", v(YV[8 + 2 * i + 1]), v(T[1]), v(HS[1]))
    a.S("s_mov_b64", "exec", s(sM56, 2))
    a.I("ds_write_b128", v(vA1), v(YV[0], 4), mods=f"offset:{YFP}")
    a.I("ds_write_b128", v(vA1), v(YV[4], 4), mods=f"offset:{YFP + 16}")
    a.I("ds_write_b128", v(vA1), v(YV[8], 4), mods=f"offset:{YFP + 1792}")
    a.I("ds_write_b128", v(vA1), v(YV[12], 4), mods=f"offset:{YFP + 1792 + 16}")
    a.S("s_mov_b64", "exec", "-1")

    for r in O:
        a.I("v_mov_b32", v(r), "0")
    a.I("v_mov_b32", v(vL), "0")
    for t in range(2):
        a.comment(f"batch {t} QK")
        for r in SC:
            a.I("v_mov_b32", v(r), "0")
        for j in range(16):
            ia, ib = KB[t] + 2 * j, KB[t] + 2 * j + 1
            a.wait_vm(ids[ib])
            A_, B_ = slot(ia), slot(ib)
            for k in range(4):
                a.I("v_dot2c_f32_bf16", v(SC[j]), v(A_ + k), v(Q[k]))
            for k in range(4):
                a.I("v_dot2c_f32_bf16", v(SC[j]), v(B_ + k), v(Q[4 + k]))
            issue(ia + R)
            issue(ib + R)
        row_allreduce(a, SC)
        for j in range(16):
            bf16r(a, SC[j], SC[j])
        mx = T[0]
        a.I("v_max3_f32", v(mx), v(SC[0]), v(SC[1]), v(SC[2]))
        for j in range(3, 15, 2):
            a.I("v_max3_f32", v(mx), v(mx), v(SC[j]), v(SC[j + 1]))
        a.I("v_max_f32", v(mx), v(mx), v(SC[15]))
        if t == 0:
            a.I("v_mov_b32", v(vM), v(mx))
        else:
            a.I("v_max_f32", v(mx), v(mx), v(vM))
            a.I("v_sub_f32", v(T[1]), v(vM), v(mx))
            a.I("v_mul_f32", v(T[1]), s(sC), v(T[1]))
            a.I("v_exp_f32", v(T[1]), v(T[1]))
            a.I("v_mov_b32", v(vM), v(mx))
            a.I("v_mul_f32", v(vL), v(vL), v(T[1]))
            for r in O:
                a.I("v_mul_f32", v(r), v(r), v(T[1]))
        a.I("v_mul_f32", v(T[2]), s(sC), v(vM))
        for j in range(16):
            a.I("v_fma_f32", v(SC[j]), v(SC[j]), s(sC), "-" + v(T[2]))
        for j in range(16):
            a.I("v_exp_f32", v(SC[j]), v(SC[j]))
        for j in range(16):
            a.I("v_cvt_pk_bf16_f32", v(P[2 * j + 1]), "0", v(SC[j]))
            a.I("v_cvt_pk_bf16_f32", v(P[2 * j]), v(SC[j]), "0")
        for j in range(16):
            a.I("v_add_f32", v(vL), v(vL), v(P[2 * j + 1]))
        for j in range(16):
            ia, ib = VB[t] + 2 * j, VB[t] + 2 * j + 1
            a.wait_vm(ids[ib])
            A_, B_ = slot(ia), slot(ib)
            for k in range(4):
                a.I("v_dot2c_f32_bf16", v(O[2 * k]), v(A_ + k), v(P[2 * j]))
                a.I("v_dot2c_f32_bf16", v(O[2 * k + 1]), v(A_ + k), v(P[2 * j + 1]))
                a.I("v_dot2c_f32_bf16", v(O[8 + 2 * k]), v(B_ + k), v(P[2 * j]))
                a.I("v_dot2c_f32_bf16", v(O[8 + 2 * k + 1]), v(B_ + k), v(P[2 * j + 1]))
            issue(ia + R)
            issue(ib + R)

    a.I("v_mov_b32", v(T[0]), v(vM))
    cross_rows_allreduce(a, T[0], T[1], op="v_max_f32")
    a.I("v_sub_f32", v(T[1]), v(vM), v(T[0]))
    a.I("v_mul_f32", v(T[1]), s(sC), v(T[1]))
    a.I("v_exp_f32", v(T[1]), v(T[1]))
    a.I("v_mul_f32", v(vL), v(vL), v(T[1]))
    for r in O:
        a.I("v_mul_f32", v(r), v(r), v(T[1]))
    cross_rows_allreduce(a, vL, T[2])
    reduce_scatter16(a, O)
    a.I("v_add_u32", v(T[3]), str(OP), v(vA4))
    a.I("ds_write_b128", v(T[3]), v(O[0], 4))
    a.I("v_mov_b32", v(T[1]), v(vL))
    a.S("s_lshl_b32", s(sTMP), s(sW), "3")
    a.S("s_add_u32", s(sTMP), s(sTMP), str(OML))
    a.I("v_mov_b32", v(T[3]), s(sTMP))
    a.I("ds_write_b64", v(T[3]), v(T[0], 2))
    a.wait_lgkm(0)
    a.barrier()
    ML = SC
    a.I("v_mov_b32", v(T[3]), str(OML))
    for k in range(4):
        a.I("ds_read_b128", v(ML[4 * k], 4), v(T[3]), mods=f"offset:{16*k}")
    a.I("v_and_b32", v(T[4]), "31", v(vLANE))
    a.S("s_lshl_b32", s(sTMP), s(sW), "7")
    a.S("s_add_u32", s(sTMP), s(sTMP), str(OP))
    a.I("v_lshlrev_b32", v(T[4]), "2", v(T[4]))
    a.I("v_add_u32", v(T[4]), s(sTMP), v(T[4]))
    OB = P[0:8]
    for w in range(8):
        a.I("ds_read_b32", v(OB[w]), v(T[4]), mods=f"offset:{w*1024}")
    a.wait_lgkm(0)
    Mx = T[0]
    a.I("v_max3_f32", v(Mx), v(ML[0]), v(ML[2]), v(ML[4]))
    a.I("v_max3_f32", v(Mx), v(Mx), v(ML[6]), v(ML[8]))
    a.I("v_max3_f32", v(Mx), v(Mx), v(ML[10]), v(ML[12]))
    a.I("v_max_f32", v(Mx), v(Mx), v(ML[14]))
    for w in range(8):
        a.I("v_sub_f32", v(ML[2 * w]), v(ML[2 * w]), v(Mx))
        a.I("v_mul_f32", v(ML[2 * w]), s(sC), v(ML[2 * w]))
    for w in range(8):
        a.I("v_exp_f32", v(ML[2 * w]), v(ML[2 * w]))
    Ls, Ot = T[1], T[2]
    a.I("v_mul_f32", v(Ls), v(ML[0]), v(ML[1]))
    a.I("v_mul_f32", v(Ot), v(ML[0]), v(OB[0]))
    for w in range(1, 8):
        a.I("v_fmac_f32", v(Ls), v(ML[2 * w]), v(ML[2 * w + 1]))
        a.I("v_fmac_f32", v(Ot), v(ML[2 * w]), v(OB[w]))
    bf16r(a, Ot, Ot)
    Y = O[0:8]
    for r in Y:
        a.I("v_mov_b32", v(r), "0")
    for i in range(32):
        hi, lo = SRL + 2 * (i % 4), SRL + 2 * (i % 4) + 1
        a.I("v_readlane_b32", s(hi), v(Ot), str(i))
        a.S("s_lshr_b32", s(lo), s(hi), "16")
        a.wait_vm(ids[WOB + i])
        W_ = slot(WOB + i)
        for k in range(4):
            a.I("v_dot2c_f32_bf16", v(Y[2 * k]), s(lo), v(W_ + k))
            a.I("v_dot2c_f32_bf16", v(Y[2 * k + 1]), s(hi), v(W_ + k))
    a.S("s_mul_i32", s(sTMP), s(sW), "1792")
    a.S("s_add_u32", s(sTMP), s(sTMP), str(YP))
    a.I("v_lshlrev_b32", v(T[3]), "5", v(vLANE))
    a.I("v_add_u32", v(T[3]), s(sTMP), v(T[3]))
    a.S("s_mov_b64", "exec", s(sM56, 2))
    a.I("ds_write_b128", v(T[3]), v(Y[0], 4))
    a.I("ds_write_b128", v(T[3]), v(Y[4], 4), mods="offset:16")
    a.S("s_mov_b64", "exec", "-1")
    a.wait_lgkm(0)
    a.barrier()
    a.S("s_cmp_ge_u32", s(sW), "7")
    a.S("s_cbranch_scc1", "K1_ML")
    a.I("v_lshlrev_b32", v(T[3]), "2", v(vTID))
    a.I("v_add_u32", v(T[4]), str(YP), v(T[3]))
    a.I("v_add_u32", v(T[5]), str(YFP), v(T[3]))
    for w in range(8):
        a.I("ds_read_b32", v(P[w]), v(T[4]), mods=f"offset:{w*1792}")
    for w in range(8):
        a.I("ds_read_b32", v(P[8 + w]), v(T[5]), mods=f"offset:{w*3584}")
    a.wait_lgkm(0)
    for w in range(8):
        a.I("ds_read_b32", v(P[16 + w]), v(T[5]), mods=f"offset:{w*3584 + 1792}")
    for w in range(1, 8):
        a.I("v_add_f32", v(P[0]), v(P[0]), v(P[w]))
        a.I("v_add_f32", v(P[8]), v(P[8]), v(P[8 + w]))
    a.wait_lgkm(0)
    for w in range(1, 8):
        a.I("v_add_f32", v(P[16]), v(P[16]), v(P[16 + w]))
    a.S("s_mul_i32", s(sTMP), s(sYROW), "1792")
    a.I("buffer_store_dword", v(P[0]), v(T[3]), s(SWS, 4), s(sTMP), mods="offen")
    a.S("s_cmp_ge_u32", s(sIDX), "28")
    a.S("s_cbranch_scc1", "K1_END")
    a.S("s_mul_i32", s(sTMP), s(sG), "3584")
    a.S("s_add_u32", s(sTMP), s(sTMP), str(YFOFF))
    a.I("buffer_store_dword", v(P[8]), v(T[3]), s(SWS, 4), s(sTMP), mods="offen")
    a.I("buffer_store_dword", v(P[16]), v(T[3]), s(SWS, 4), s(sTMP), mods="offen offset:1792")
    a.S("s_branch", "K1_END")
    a.label("K1_ML")
    a.S("s_lshl_b32", s(sTMP), s(sYROW), "3")
    a.S("s_add_u32", s(sTMP), s(sTMP), str(MLOFF))
    a.I("v_mov_b32", v(T[3]), "0")
    a.S("s_mov_b64", "exec", "1")
    a.I("buffer_store_dwordx2", v(T[0], 2), v(T[3]), s(SWS, 4), s(sTMP), mods="offen")
    a.label("K1_END")
    a.S("s_endpgm")
    return a.text()


def gen_k2():
    a = Asm()
    a.raw(".p2align 8")
    a.raw(".globl k2_kernel")
    a.raw(".type k2_kernel,@function")
    a.raw("k2_kernel:")
    a.S("s_cmp_ge_u32", "s2", "56")
    a.S("s_cbranch_scc1", "K2_END")
    a.S("s_load_dwordx2", s(16, 2), s(0, 2), "0")
    a.S("s_load_dwordx2", s(18, 2), s(0, 2), "72")
    a.S("s_load_dwordx2", s(20, 2), s(0, 2), "88")
    sBb, sCG = 4, 5
    a.S("s_cmp_ge_u32", "s2", "28")
    a.S("s_cselect_b32", s(sBb), "1", "0")
    a.S("s_mul_i32", s(6), s(sBb), "28")
    a.S("s_sub_u32", s(sCG), "s2", s(6))
    a.S("s_mov_b32", s(14), f32(C_EXP))
    a.I("v_and_b32", v(1), "3", v(0))
    a.I("v_lshrrev_b32", v(2), "2", v(0))
    a.S("s_lshl_b32", s(6), s(sCG), "6")
    a.I("v_lshl_add_u32", v(3), v(1), "4", s(6))
    a.S("s_lshl_b32", s(7), s(sBb), "7")
    a.I("v_add_u32", v(4), s(7), v(2))
    a.S("s_mov_b32", s(8), "1792")
    a.I("v_mul_lo_u32", v(4), s(8), v(4))
    a.I("v_add_u32", v(4), v(4), v(3))
    a.S("s_mov_b32", s(8), "3584")
    a.I("v_mul_lo_u32", v(5), s(8), v(2))
    a.S("s_mul_i32", s(9), s(sBb), "1792")
    a.I("v_add3_u32", v(5), v(5), v(3), s(9))
    a.I("v_add_u32", v(6), s(7), v(0))
    a.I("v_lshlrev_b32", v(6), "3", v(6))
    a.wait_lgkm(0)
    srd(a, 24, 16, 1792)
    srd(a, 28, 18, 1792)
    srd(a, 32, 20, 0x100000)
    a.S("s_add_u32", s(22), s(20), hex(YFOFF))
    a.S("s_addc_u32", s(23), s(21), "0")
    srd(a, 36, 22, 224 * 3584)
    a.S("s_mov_b32", s(10), hex(MLOFF))
    idml = a.I("buffer_load_dwordx2", v(8, 2), v(6), s(32, 4), s(10), mods="offen")
    idy0 = a.I("buffer_load_dwordx4", v(12, 4), v(4), s(32, 4), "0", mods="offen")
    a.S("s_mov_b32", s(10), str(64 * 1792))
    idy1 = a.I("buffer_load_dwordx4", v(16, 4), v(4), s(32, 4), s(10), mods="offen")
    idf = []
    for i in range(4):
        if i:
            a.S("s_mov_b32", s(10), str(i * 64 * 3584))
        idf.append(a.I("buffer_load_dwordx4", v(20 + 4 * i, 4), v(5), s(36, 4), s(10) if i else "0", mods="offen"))
    a.S("s_mul_i32", s(11), s(sBb), "896")
    a.S("s_lshl_b32", s(12), s(sCG), "5")
    a.S("s_add_u32", s(11), s(11), s(12))
    a.I("v_lshlrev_b32", v(7), "1", v(0))
    a.I("v_add_u32", v(7), s(11), v(7))
    idx = a.I("buffer_load_ushort", v(10), v(7), s(24, 4), "0", mods="offen")
    a.wait_vm(idml)
    steps = ["quad_perm:[1,0,3,2]", "quad_perm:[2,3,0,1]", "row_half_mirror"]
    a.I("v_mov_b32", v(36), v(8))
    for st in steps:
        a.I("v_max_f32_dpp", v(36), v(36), v(36), mods=st + DPPM)
    a.I("v_sub_f32", v(37), v(8), v(36))
    a.I("v_mul_f32", v(37), s(14), v(37))
    a.I("v_exp_f32", v(37), v(37))
    a.I("v_mul_f32", v(38), v(37), v(9))
    for st in steps:
        a.I("v_add_f32_dpp", v(38), v(38), v(38), mods=st + DPPM)
    a.I("v_rcp_f32", v(39), v(38))
    a.I("v_mul_f32", v(40), v(37), v(39))
    a.I("v_fma_f32", v(41), "-" + v(40), v(38), v(37))
    a.I("v_fma_f32", v(40), v(41), v(39), v(40))
    a.I("v_lshlrev_b32", v(42), "2", v(0))
    a.I("v_cmp_gt_u32", "vcc", "0x80", v(0))
    a.S("s_and_saveexec_b64", s(40, 2), "vcc")
    a.I("ds_write_b32", v(42), v(40))
    a.S("s_mov_b64", "exec", s(40, 2))
    a.wait_lgkm(0)
    a.barrier()
    a.I("v_lshlrev_b32", v(42), "2", v(2))
    a.I("ds_read_b32", v(43), v(42))
    a.I("ds_read_b32", v(44), v(42), mods="offset:256")
    a.wait_lgkm(0)
    a.wait_vm(idy1)
    for k in range(4):
        a.I("v_mul_f32", v(12 + k), v(12 + k), v(43))
        a.I("v_fmac_f32", v(12 + k), v(16 + k), v(44))
    a.wait_vm(idf[3])
    for k in range(4):
        a.I("v_add_f32", v(20 + k), v(20 + k), v(24 + k))
        a.I("v_add_f32", v(28 + k), v(28 + k), v(32 + k))
        a.I("v_add_f32", v(16 + k), v(20 + k), v(28 + k))
    regs = list(range(12, 20))
    for st in ("row_ror:4", "row_ror:8"):
        for r in regs:
            a.I("v_add_f32_dpp", v(r), v(r), v(r), mods=st + DPPM)
    for r in regs:
        cross_rows_allreduce(a, r, 45 + (r % 2))
    a.I("v_lshrrev_b32", v(46), "6", v(0))
    a.I("v_lshlrev_b32", v(46), "7", v(46))
    a.I("v_lshl_add_u32", v(46), v(1), "5", v(46))
    a.I("v_and_b32", v(47), "63", v(0))
    a.I("v_cmp_gt_u32", "vcc", "4", v(47))
    a.S("s_and_saveexec_b64", s(40, 2), "vcc")
    a.I("ds_write_b128", v(46), v(12, 4), mods="offset:1024")
    a.I("ds_write_b128", v(46), v(16, 4), mods="offset:1040")
    a.S("s_mov_b64", "exec", s(40, 2))
    a.wait_lgkm(0)
    a.barrier()
    a.I("v_cmp_gt_u32", "vcc", "16", v(0))
    a.S("s_and_saveexec_b64", s(40, 2), "vcc")
    a.S("s_cbranch_execz", "K2_END")
    a.I("v_lshlrev_b32", v(46), "5", v(2))
    a.I("v_lshl_add_u32", v(46), v(1), "2", v(46))
    for w in range(4):
        a.I("ds_read_b32", v(12 + w), v(46), mods=f"offset:{1024 + w*128}")
        a.I("ds_read_b32", v(16 + w), v(46), mods=f"offset:{1024 + w*128 + 16}")
    a.wait_lgkm(0)
    a.I("v_add_f32", v(12), v(12), v(13))
    a.I("v_add_f32", v(14), v(14), v(15))
    a.I("v_add_f32", v(12), v(12), v(14))
    a.I("v_add_f32", v(16), v(16), v(17))
    a.I("v_add_f32", v(18), v(18), v(19))
    a.I("v_add_f32", v(16), v(16), v(18))
    bf16r(a, 12, 12)
    bf16r(a, 16, 16)
    a.wait_vm(idx)
    a.I("v_lshlrev_b32", v(10), "16", v(10))
    a.I("v_add_f32", v(10), v(10), v(12))
    bf16r(a, 10, 10)
    a.I("v_add_f32", v(10), v(10), v(16))
    a.I("v_cvt_pk_bf16_f32", v(10), v(10), "0")
    a.I("buffer_store_short", v(10), v(7), s(28, 4), "0", mods="offen")
    a.label("K2_END")
    a.S("s_endpgm")
    return a.text()


HEADER = open("cdna_kernels/" + NAME + ".s.ref").read().split("; Override launch geometry")[0]

out = HEADER
out += f"; @launch kernel=k1_kernel grid=(256,1,1) block=(512,1,1) lds={LDS1}\n"
out += "; @launch kernel=k2_kernel grid=(56,1,1) block=(256,1,1) lds=2048\n"
out += '.amdgcn_target "amdgcn-amd-amdhsa--gfx950"\n.text\n'
out += gen_k1()
out += gen_k2()
out += """.section .rodata,"a"
.p2align 6
.amdhsa_kernel k1_kernel
  .amdhsa_next_free_vgpr 256
  .amdhsa_next_free_sgpr 102
  .amdhsa_accum_offset 256
  .amdhsa_group_segment_fixed_size 0
  .amdhsa_kernarg_size 96
  .amdhsa_user_sgpr_count 2
  .amdhsa_user_sgpr_kernarg_segment_ptr 1
  .amdhsa_system_sgpr_workgroup_id_x 1
.end_amdhsa_kernel
.p2align 6
.amdhsa_kernel k2_kernel
  .amdhsa_next_free_vgpr 64
  .amdhsa_next_free_sgpr 64
  .amdhsa_accum_offset 64
  .amdhsa_group_segment_fixed_size 0
  .amdhsa_kernarg_size 96
  .amdhsa_user_sgpr_count 2
  .amdhsa_user_sgpr_kernarg_segment_ptr 1
  .amdhsa_system_sgpr_workgroup_id_x 1
.end_amdhsa_kernel
"""
dest = "cdna_kernels/" + NAME + ".s"
for a_ in sys.argv[1:]:
    if a_.startswith("out="):
        dest = a_[4:]
open(dest, "w").write(out)
print("wrote", dest, len(out))
```
